```python
import torch

def _softmax(x, axis=-1):
    return torch.softmax(x, dim=axis)
def _gelu(x):
    return torch.nn.functional.gelu(x, approximate="tanh")
def _silu(x):
    return torch.nn.functional.silu(x)
def _sigmoid(x):
    return torch.sigmoid(x)
def _layernorm(x, axis=-1, eps=1e-5):
    m = x.mean(dim=axis, keepdim=True)
    v = x.var(dim=axis, keepdim=True, unbiased=False)
    return (x - m) / torch.sqrt(v + eps)
def _scatter_add(tgt, idx, src, axis=0):
    return tgt.clone().index_add_(axis, idx, src)
def _segment_sum(src, seg, n):
    out = torch.zeros((n,) + src.shape[1:], dtype=src.dtype)
    return out.index_add_(0, seg, src)
def _pad(x, pw):
    flat = tuple(v for pair in reversed(pw) for v in pair)
    return torch.nn.functional.pad(x, flat)

kernel_name = 'gated_mix__linear_attn_block__geglu_ffn__prompt'

def setup_inputs():

    _w = (lambda a: (lambda t: t.to(torch.bfloat16) if t.is_floating_point() else t)(torch.as_tensor(a)))
    def _A_setup():
        B, S, D = 1, 2048, 576
        return {
            "x": _w((lambda *s: torch.randn(*s, dtype=torch.bfloat16) * 0.05)(B, S, D)),
            "wqkv": _w((lambda *s: torch.randn(*s, dtype=torch.bfloat16) * 0.8)(D, 3 * D)),
            "wo": _w((lambda *s: torch.randn(*s, dtype=torch.bfloat16) * 0.05)(D, D)),
        }
    _A_in = _A_setup()

    def _B_setup():
        B, S, D, F = 1, 2048, 576, 4608
        return {
            "x": _w((lambda *s: torch.randn(*s, dtype=torch.bfloat16) * 0.05)(B, S, D)),
            "w_gate": _w((lambda *s: torch.randn(*s, dtype=torch.bfloat16) * 0.05)(D, F)),
            "w_up": _w((lambda *s: torch.randn(*s, dtype=torch.bfloat16) * 0.05)(D, F)),
            "w_down": _w((lambda *s: torch.randn(*s, dtype=torch.bfloat16) * 0.05)(F, D)),
        }
    _B_in = _B_setup()

    return {
        "A_x": _A_in["x"],
        "A_wqkv": _A_in["wqkv"],
        "A_wo": _A_in["wo"],
        "B_x": _B_in["x"],
        "B_w_gate": _B_in["w_gate"],
        "B_w_up": _B_in["w_up"],
        "B_w_down": _B_in["w_down"],
        "gate_w": _w((lambda *s: torch.randn(*s, dtype=torch.bfloat16) * 0.05)(576) * 16.0),
    }

def reference(A_x, A_wqkv, A_wo, B_x, B_w_gate, B_w_up, B_w_down, gate_w):
    def _A_ref(x, wqkv, wo):
        B, S, D = x.shape
        H = 32; Dh = D // H
        qkv = (lambda x, *d: x.permute(*d))((x @ wqkv).reshape(B, S, 3, H, Dh), 2, 0, 3, 1, 4)
        q, k, v = qkv[0], qkv[1], qkv[2]
        phi = lambda t: torch.where(t > 0, t + 1, torch.exp(t)) + 1e-6
        pq, pk = phi(q), phi(k)
        kv = torch.einsum("bhsd,bhse->bhde", pk, v)
        z = torch.einsum("bhsd->bhd", pk)
        num = torch.einsum("bhqd,bhde->bhqe", pq, kv)
        den = torch.einsum("bhqd,bhd->bhq", pq, z)[..., None] + 1e-6
        o = num / den
        return (lambda x, *d: x.permute(*d))(o, 0, 2, 1, 3).reshape(B, S, D) @ wo

    def _B_ref(x, w_gate, w_up, w_down):
        return (_gelu(x @ w_gate) * (x @ w_up)) @ w_down

    x = A_x
    g = _sigmoid((x * gate_w).sum(-1, keepdims=True))
    a = _A_ref(x, A_wqkv, A_wo)
    b = _B_ref(x, B_w_gate, B_w_up, B_w_down)
    return g * a + (1 - g) * b
```

```python
import struct

def f32bits(x):
    return struct.unpack("<I", struct.pack("<f", x))[0]

class Asm:
    def __init__(self):
        self.lines = []
        self.lgkm = []
        self.nlabel = 0
    def e(self, s):
        self.lines.append("    " + s)
    def c(self, s):
        self.lines.append("    ; " + s)
    def label(self, name):
        self.lines.append(name + ":")
    def newlabel(self, base="L"):
        self.nlabel += 1
        return f"{base}_{self.nlabel}"
    def lds(self, s, tag):
        self.e(s)
        self.lgkm.append(tag)
    def wait_lds(self, tags):
        if isinstance(tags, (str, tuple)): tags = [tags]
        last = -1
        for i, t in enumerate(self.lgkm):
            if t in tags: last = i
        if last < 0: return
        n = len(self.lgkm) - 1 - last
        assert n <= 15, n
        self.e(f"s_waitcnt lgkmcnt({n})")
        self.lgkm = self.lgkm[last+1:]
    def wait_lds_all(self):
        self.e("s_waitcnt lgkmcnt(0)")
        self.lgkm = []
    def text(self):
        return "\n".join(self.lines) + "\n"

def vr(a, n=1):
    return f"v{a}" if n == 1 else f"v[{a}:{a+n-1}]"
def sr(a, n=1):
    return f"s{a}" if n == 1 else f"s[{a}:{a+n-1}]"
def ar(a, n=1):
    return f"a{a}" if n == 1 else f"a[{a}:{a+n-1}]"

S, D, F = 2048, 576, 4608
NKS = 324
HP_OFF = 0
HP_BYTES = 64 * NKS * 1024
G_OFF = HP_BYTES
KVP_OFF = G_OFF + 8192
KVP_STRIDE = 1408 * 4
P_OFF = KVP_OFF + 64 * KVP_STRIDE
P_OFF = (P_OFF + 4095) // 4096 * 4096
WS_USED = 64 << 20

KD = """
.section .rodata,"a"
.p2align 6
.amdhsa_kernel {name}
  .amdhsa_next_free_vgpr {nv}
  .amdhsa_next_free_sgpr {ns}
  .amdhsa_accum_offset {ao}
  .amdhsa_group_segment_fixed_size 0
  .amdhsa_kernarg_size 88
  .amdhsa_user_sgpr_count 2
  .amdhsa_user_sgpr_kernarg_segment_ptr 1
  .amdhsa_system_sgpr_workgroup_id_x 1
.end_amdhsa_kernel
.text
"""

import os
STAMPS = os.environ.get("STAMPS", "0") == "1"
ST_OFF = 48 << 20
def stamp(a, idx, sreg=90, real=False):
    if not STAMPS: return
    a.e("s_memrealtime s[98:99]" if real else "s_memtime s[98:99]")
    a.e("s_waitcnt lgkmcnt(0)")
    a.e(f"s_mov_b32 s{sreg+idx}, s98")
def stamp_flush(a, n, swave, srdws, sreg=90, vtmp=(250,251)):
    if not STAMPS: return
    a.e(f"s_lshl_b32 s98, s2, 4"); a.e(f"s_add_u32 s98, s98, s{swave}"); a.e("s_lshl_b32 s98, s98, 5")
    a.e(f"s_add_u32 s98, s98, {ST_OFF}")
    a.e(f"v_mov_b32 v{vtmp[0]}, 0")
    for i in range(n):
        a.e(f"v_mov_b32 v{vtmp[1]}, s{sreg+i}")
        a.e(f"buffer_store_dword v{vtmp[1]}, v{vtmp[0]}, s[{srdws}:{srdws+3}], s98 offen offset:{4*i}")
        a.e("s_nop 1")
```

```python
from common import *

XS = 32768
GREG = 65536
UREG = GREG + 49152
WSL = 12288
LOG2E = 1.4426950408889634

SX, SW, SWS, SGW, SDBG = 4, 8, 12, 16, 20
sWAVE, sR, sC, sX0, sX1, sWOFF, sM0X, sM0W, sI, sDELTA, sWSLOT = 24, 25, 26, 27, 28, 29, 30, 31, 32, 33, 34
sT = 36
sMASK = 42
sM0WB = 35
sK = 70

def srd(a, base, reg, nbytes):
    a.e(f"s_mov_b32 s{reg}, s{base}")
    a.e(f"s_and_b32 s{reg+1}, s{base+1}, 0xffff")
    a.e(f"s_mov_b32 s{reg+2}, {nbytes}")
    a.e(f"s_mov_b32 s{reg+3}, 0x00020000")

def dma_x(a, masked=False):
    for q in range(4):
        if q == 0: a.e(f"s_mov_b32 m0, s{sM0X}")
        else: a.e(f"s_add_u32 m0, s{sM0X}, {q*1024}")
        a.e("s_nop 0")
        a.e(f"buffer_load_dwordx4 v{8+(q&1)}, {sr(SX,4)}, s{sX0+(q>>1)} offen lds")
    a.e(f"s_add_u32 s{sX0}, s{sX0}, 128")
    a.e(f"s_add_u32 s{sX1}, s{sX1}, 128")
    a.e(f"s_xor_b32 s{sM0X}, s{sM0X}, {XS}")

def dma_w(a, rowpitch, masked):
    for q in range(3):
        if q == 0: a.e(f"s_mov_b32 m0, s{sM0W}")
        else: a.e(f"s_add_u32 m0, s{sM0W}, {q*1024}")
        if masked: a.e(f"s_mov_b64 exec, {sr(sMASK+2*q,2)}")
        else: a.e("s_nop 0")
        a.e(f"buffer_load_dwordx4 v{10+q}, {sr(SW,4)}, s{sWOFF} offen lds")
    if masked: a.e("s_mov_b64 exec, -1")
    a.e(f"s_add_u32 s{sWOFF}, s{sWOFF}, {32*rowpitch}")
    a.e(f"s_add_u32 s{sWSLOT}, s{sWSLOT}, 1")
    a.e(f"s_and_b32 s{sWSLOT}, s{sWSLOT}, 3")
    a.e(f"s_mul_i32 s{sM0W}, s{sWSLOT}, {WSL}")
    a.e(f"s_add_u32 s{sM0W}, s{sM0W}, s{sM0WB}")

def mainloop(a, role):
    ntt = role["ntt"]; tiles = role["tiles"]; XF = role["XF"]; RING = role["RING"]; NR = role["NR"]; LA = role["LA"]
    nb = role["nbases"]
    NT = len(tiles)
    def xfrag(ks, tt): return XF + (ks*ntt + tt)*4
    def read_x(ks):
        for tt in range(ntt):
            a.lds(f"ds_read_b128 {vr(xfrag(ks,tt),4)}, v{4+ks} offset:{tt*4096}", ("x", ks))
    def read_tile(n):
        nn = n % (4*NT)
        ks, j = divmod(nn, NT)
        kk = ks & 1
        t = tiles[j]
        slot = RING + (n % NR)*4
        if t["kind"] == "tr":
            for half in range(2):
                a.lds(f"ds_read_b64_tr_b16 {vr(slot+2*half,2)}, v{t['base']} offset:{t['imm'] + kk*6144 + half*1536}", ("A", nn))
        else:
            a.lds(f"ds_read_b128 {vr(slot,4)}, v13 offset:{t['imm'](ks)}", ("A", nn))
    assert (4*NT) % NR == 0
    def base_update(first):
        for b in range(nb):
            if first: a.e(f"v_add_u32 v{1+b}, {WSL}, v{1+b}")
            else: a.e(f"v_add_u32 v{1+b}, s{sDELTA}, v{1+b}")
        if not first:
            a.e(f"s_sub_u32 s{sDELTA}, {(-24576) & 0xffffffff}, s{sDELTA}")
    for ks in range(3): read_x(ks)
    a.wait_lds([("x",0),("x",1),("x",2)])
    for n in range(LA): read_tile(n)
    entry_state = list(a.lgkm)
    a.e(f"s_mov_b32 s{sI}, 0")
    loop = a.newlabel("loop")
    a.label(loop)
    for ks in range(4):
        for j in range(NT):
            n = ks*NT + j
            if ks == 0 and j == 0:
                read_x(3)
                for b in range(4): a.e(f"v_xor_b32 v{4+b}, {XS}, v{4+b}")
            if ks == 3 and j < 3:
                read_x(j)
            m = n + LA
            if (m % NT) == 0 and (m // NT) % 2 == 0:
                base_update(first=(m // NT == 2))
                if role.get("gw") and m // NT == 4:
                    a.e("v_add_u32 v13, 384, v13")
            read_tile(m)
            need = [("A", n)]
            if j == 0: need.append(("x", ks))
            a.wait_lds(need)
            t = tiles[j]
            slot = RING + (n % NR)*4
            for tt in range(ntt):
                acc = t["acc"][tt]
                A, B = vr(slot,4), vr(xfrag(ks,tt),4)
                if t.get("swap"): A, B = B, A
                a.e(f"v_mfma_f32_32x32x16_bf16 {vr(acc,16)}, {A}, {B}, {vr(acc,16)}")
        if ks in (0, 2):
            if ks == 0: a.wait_lds([("x",3)])
            a.e("s_waitcnt vmcnt(7)")
            skip = a.newlabel("nt")
            if ks == 0:
                a.e(f"s_cmp_lt_u32 s{sI}, 8"); a.e(f"s_cbranch_scc1 {skip}"); a.e("s_waitcnt vmcnt(0)")
            else:
                a.e(f"s_cmp_lt_u32 s{sI}, 7"); a.e(f"s_cbranch_scc1 {skip}"); a.e("s_waitcnt vmcnt(3)")
            a.label(skip)
            a.e("s_barrier")
            sk = a.newlabel("nd")
            if ks == 0:
                a.e(f"s_cmp_gt_u32 s{sI}, 7"); a.e(f"s_cbranch_scc1 {sk}")
                dma_w(a, role["rowpitch"], role["masked"])
                a.e(f"s_cmp_gt_u32 s{sI}, 6"); a.e(f"s_cbranch_scc1 {sk}")
                dma_x(a)
            else:
                a.e(f"s_cmp_gt_u32 s{sI}, 6"); a.e(f"s_cbranch_scc1 {sk}")
                dma_w(a, role["rowpitch"], role["masked"])
            a.label(sk)
    assert a.lgkm == entry_state, (a.lgkm, entry_state)
    a.e(f"s_add_u32 s{sI}, s{sI}, 1")
    a.e(f"s_cmp_lt_u32 s{sI}, 9")
    a.e(f"s_cbranch_scc1 {loop}")
    a.wait_lds_all()

def common_setup(a):
    a.e("v_and_b32 v14, 63, v0")
    a.e("v_lshrrev_b32 v15, 6, v0")
    a.e("s_nop 0")
    a.e(f"v_readfirstlane_b32 s{sWAVE}, v15")
    a.e("v_lshrrev_b32 v15, 3, v14")
    a.e("v_mul_u32_u24 v8, 1152, v15")
    a.e("v_lshrrev_b32 v15, 4, v14")
    a.e("v_and_b32 v13, 7, v14")
    a.e("v_xor_b32 v13, v13, v15")
    a.e("v_lshl_add_u32 v9, v13, 4, v8")
    a.e("v_xor_b32 v13, 4, v13")
    a.e("v_lshl_add_u32 v13, v13, 4, v8")
    a.e("v_mov_b32 v8, v9")
    a.e(f"v_add_u32 v9, {8*1152}, v13")

def wdma_decode(a, q, vrow, vseg, vwithin):
    a.e(f"v_add_u32 v15, {64*q}, v14")
    a.e(f"v_mul_u32_u24 v{vrow}, 2731, v15")
    a.e(f"v_lshrrev_b32 v{vrow}, 16, v{vrow}")
    a.e(f"v_mul_u32_u24 v{vseg}, 24, v{vrow}")
    a.e(f"v_sub_u32 v15, v15, v{vseg}")
    a.e(f"v_and_b32 v{vwithin}, 3, v15")
    a.e(f"v_lshlrev_b32 v{vwithin}, 4, v{vwithin}")
    a.e(f"v_lshrrev_b32 v{vseg}, 2, v15")
    a.e(f"v_bfe_u32 v15, v{vrow}, 1, 1")
    a.e(f"v_xor_b32 v{vseg}, v{vseg}, v15")

def tr_lane_base(a, vdst, vswz):
    a.e("v_lshrrev_b32 v15, 5, v14")
    a.e(f"v_lshlrev_b32 v{vdst}, 3, v15")
    a.e("v_bfe_u32 v15, v14, 2, 2")
    a.e(f"v_add_u32 v{vdst}, v{vdst}, v15")
    a.e(f"v_mul_u32_u24 v{vdst}, 384, v{vdst}")
    a.e(f"v_lshrrev_b32 v{vswz}, 1, v15")
    a.e("v_bfe_u32 v15, v14, 4, 1")
    a.e(f"v_lshl_add_u32 v{vdst}, v15, 5, v{vdst}")
    a.e("v_and_b32 v15, 3, v14")
    a.e(f"v_lshl_add_u32 v{vdst}, v15, 3, v{vdst}")
    a.e(f"v_add_u32 v{vdst}, {GREG}, v{vdst}")

def x_read_bases(a, stokbase):
    a.e("v_and_b32 v15, 31, v14")
    a.e(f"v_add_u32 v15, s{stokbase}, v15")
    a.e("v_lshlrev_b32 v4, 7, v15")
    a.e("v_bfe_u32 v15, v14, 1, 3")
    a.e("v_lshrrev_b32 v13, 5, v14")
    a.e("v_xor_b32 v15, v15, v13")
    a.e("v_lshl_add_u32 v4, v15, 4, v4")
    for ks in range(1, 4):
        a.e(f"v_xor_b32 v{4+ks}, {32*ks}, v4")

def prologue_dma(a, rowpitch, masked):
    dma_x(a); dma_w(a, rowpitch, masked); dma_w(a, rowpitch, masked); dma_x(a); dma_w(a, rowpitch, masked)

def gen_ffn(a):
    a.c("================= FFN role =================")
    a.e(f"s_cmp_lt_u32 s{sWAVE}, 4")
    a.e(f"s_cselect_b32 s{sT}, s56, s58")
    a.e(f"s_cselect_b32 s{sT+1}, s57, s59")
    srd(a, sT, SW, D*F*2)
    a.e(f"s_lshl_b32 s{sT}, s{sR}, 8")
    a.e(f"s_lshl_b32 s{sT+1}, s{sWAVE}, 5")
    a.e(f"s_add_u32 s{sT}, s{sT}, s{sT+1}")
    a.e(f"s_mul_i32 s{sX0}, s{sT}, 1152")
    a.e(f"s_add_u32 s{sX1}, s{sX0}, {16*1152}")
    a.e(f"s_lshl_b32 s{sM0X}, s{sWAVE}, 12")
    a.e(f"s_and_b32 s{sT}, s{sWAVE}, 3")
    a.e(f"s_mul_i32 s{sWOFF}, s{sT}, {8*9216}")
    a.e(f"s_mul_i32 s{sT+1}, s{sC}, 384")
    a.e(f"s_add_u32 s{sWOFF}, s{sWOFF}, s{sT+1}")
    a.e(f"s_mul_i32 s{sM0WB}, s{sT}, 3072")
    a.e(f"s_cmp_lt_u32 s{sWAVE}, 4")
    a.e(f"s_cselect_b32 s{sT+1}, 0, {UREG-GREG}")
    a.e(f"s_add_u32 s{sM0WB}, s{sM0WB}, s{sT+1}")
    a.e(f"s_add_u32 s{sM0WB}, s{sM0WB}, {GREG}")
    a.e(f"s_mov_b32 s{sM0W}, s{sM0WB}")
    a.e(f"s_mov_b32 s{sWSLOT}, 0")
    a.e(f"s_mov_b32 s{sDELTA}, {WSL}")
    for q in range(3):
        wdma_decode(a, q, 16, 17, 18)
        a.e(f"v_mul_u32_u24 v{10+q}, 9216, v16")
        a.e(f"v_lshl_add_u32 v{10+q}, v17, 6, v{10+q}")
        a.e(f"v_add_u32 v{10+q}, v{10+q}, v18")
    prologue_dma(a, 9216, False)
    a.e(f"s_and_b32 s{sT}, s{sWAVE}, 3")
    a.e(f"s_lshl_b32 s{sT}, s{sT}, 6")
    x_read_bases(a, sT)
    tr_lane_base(a, 16, 17)
    a.e(f"s_lshr_b32 s{sT}, s{sWAVE}, 2")
    a.e(f"s_mul_i32 s{sT}, s{sT}, 3")
    for j in range(3):
        a.e(f"s_add_u32 s{sT+1}, s{sT}, {j}")
        a.e(f"v_xor_b32 v15, s{sT+1}, v17")
        a.e(f"v_lshl_add_u32 v{1+j}, v15, 6, v16")
    ACC = 64
    for i in range(192): a.e(f"v_mov_b32 v{ACC+i}, 0")
    a.e("s_waitcnt vmcnt(10)")
    a.e("s_barrier")
    stamp(a, 1)
    tiles = []
    for gu in range(2):
        for j in range(3):
            idx = gu*3 + j
            tiles.append(dict(kind="tr", base=1+j, imm=gu*49152, acc=[ACC + (idx*2+tt)*16 for tt in range(2)]))
    role = dict(ntt=2, tiles=tiles, XF=16, RING=48, NR=4, LA=3, rowpitch=9216, masked=False, nbases=3)
    mainloop(a, role)
    a.c("FFN epilogue")
    stamp(a, 2)
    c1 = -2.0*LOG2E*0.7978845608028654
    c2 = c1*0.044715
    a.e(f"s_mov_b32 s{sK}, {f32bits(c1):#x}"); a.e(f"s_mov_b32 s{sK+1}, {f32bits(c1):#x}")
    a.e(f"s_mov_b32 s{sK+2}, {f32bits(c2):#x}"); a.e(f"s_mov_b32 s{sK+3}, {f32bits(c2):#x}")
    a.e(f"s_and_b32 s{sT}, s{sWAVE}, 3")
    a.e(f"s_lshl_b32 s{sT}, s{sT}, 1")
    a.e(f"s_lshl_b32 s{sT+1}, s{sR}, 3")
    a.e(f"s_add_u32 s{sT}, s{sT}, s{sT+1}")
    a.e(f"s_mul_i32 s{sT}, s{sT}, {NKS}")
    a.e(f"s_mul_i32 s{sT+1}, s{sC}, 12")
    a.e(f"s_add_u32 s{sT}, s{sT}, s{sT+1}")
    a.e(f"s_lshr_b32 s{sT+1}, s{sWAVE}, 2")
    a.e(f"s_mul_i32 s{sT+1}, s{sT+1}, 6")
    a.e(f"s_add_u32 s{sT}, s{sT}, s{sT+1}")
    a.e(f"s_lshl_b32 s{sT}, s{sT}, 10")
    a.e(f"s_add_u32 s{sT+1}, s{sT}, {NKS*1024}")
    a.e(f"s_add_u32 s{sT+2}, s{sT}, 4096")
    a.e(f"s_add_u32 s{sT+3}, s{sT+1}, 4096")
    a.e("v_lshlrev_b32 v1, 4, v14")
    a.e("v_mov_b32 v2, 1.0"); a.e("v_mov_b32 v3, 1.0")
    a.e("s_nop 7")
    T = 16
    a.e(f"v_mov_b32 v62, s{sK}"); a.e(f"v_mov_b32 v63, s{sK}")
    blk = 0
    for j in range(3):
        for tt in range(2):
            g = ACC + (j*2+tt)*16; u = ACC + ((3+j)*2+tt)*16
            for hs in range(2):
                t0 = T + (blk % 2)*20; blk += 1
                out = t0 + 16
                for p in range(4):
                    gg = g + hs*8 + 2*p; uu = u + hs*8 + 2*p; t = t0 + 4*p
                    a.e(f"v_pk_mul_f32 {vr(t,2)}, {vr(gg,2)}, {vr(gg,2)}")
                    a.e(f"v_pk_mul_f32 {vr(t+2,2)}, {vr(gg,2)}, {vr(uu,2)}")
                for p in range(4):
                    t = t0 + 4*p
                    a.e(f"v_pk_fma_f32 {vr(t,2)}, {vr(t,2)}, {sr(sK+2,2)}, v[62:63]")
                for p in range(4):
                    gg = g + hs*8 + 2*p; t = t0 + 4*p
                    a.e(f"v_pk_mul_f32 {vr(t,2)}, {vr(t,2)}, {vr(gg,2)}")
                for p in range(4):
                    t = t0 + 4*p
                    a.e(f"v_exp_f32 v{t}, v{t}"); a.e(f"v_exp_f32 v{t+1}, v{t+1}")
                for p in range(4):
                    t = t0 + 4*p
                    a.e(f"v_pk_add_f32 {vr(t,2)}, {vr(t,2)}, v[2:3]")
                for p in range(4):
                    t = t0 + 4*p
                    a.e(f"v_rcp_f32 v{t}, v{t}"); a.e(f"v_rcp_f32 v{t+1}, v{t+1}")
                for p in range(4):
                    t = t0 + 4*p
                    a.e(f"v_pk_mul_f32 {vr(t,2)}, {vr(t,2)}, {vr(t+2,2)}")
                for p in range(4):
                    t = t0 + 4*p
                    a.e(f"v_cvt_pk_bf16_f32 v{out+p}, v{t}, v{t+1}")
                ksl = 2*j + hs
                so = sT + tt + (2 if ksl >= 4 else 0)
                a.e(f"buffer_store_dwordx4 {vr(out,4)}, v1, {sr(SWS,4)}, s{so} offen offset:{(ksl%4)*1024}")
    stamp(a, 3)
    if STAMPS: a.e("s_waitcnt vmcnt(0)")
    stamp(a, 4)
    stamp(a, 6, real=True)
    stamp_flush(a, 7, sWAVE, SWS)
    a.e("s_endpgm")

def phi_pack(a, src, dst, neps, tmp):
    n = 8
    for i in range(n): a.e(f"v_min_f32 v{tmp+i}, 0, v{src+i}")
    for i in range(0, n, 2): a.e(f"v_pk_mul_f32 {vr(tmp+i,2)}, {vr(tmp+i,2)}, {sr(sK,2)}")
    for i in range(n): a.e(f"v_exp_f32 v{tmp+i}, v{tmp+i}")
    for i in range(n): a.e(f"v_max_f32 v{tmp+8+i}, 0, v{src+i}")
    for i in range(0, n, 2): a.e(f"v_pk_add_f32 {vr(tmp+i,2)}, {vr(tmp+i,2)}, {vr(tmp+8+i,2)}")
    for i in range(0, n, 2): a.e(f"v_pk_add_f32 {vr(tmp+i,2)}, {vr(tmp+i,2)}, {sr(sK+2,2)}")
    for i in range(0, n, 2): a.e(f"v_cvt_pk_bf16_f32 v{dst+i//2}, v{tmp+i}, v{tmp+i+1}")

def gen_qkv(a):
    a.c("================= QKV role =================")
    AIMG = 98304
    srd(a, 50, SW, D*1728*2)
    srd(a, 62, SGW, D*2)
    srd(a, 66, SDBG, 256)
    a.e("v_lshlrev_b32 v15, 4, v0")
    a.e(f"buffer_load_dwordx4 v[20:23], v15, {sr(SGW,4)}, 0 offen")
    a.e(f"s_lshl_b32 s{sT}, s{sR}, 8")
    a.e(f"s_lshl_b32 s{sT+1}, s{sWAVE}, 5")
    a.e(f"s_add_u32 s{sT}, s{sT}, s{sT+1}")
    a.e(f"s_mul_i32 s{sX0}, s{sT}, 1152")
    a.e(f"s_add_u32 s{sX1}, s{sX0}, {16*1152}")
    a.e(f"s_lshl_b32 s{sM0X}, s{sWAVE}, 12")
    a.e(f"s_and_b32 s{sT}, s{sWAVE}, 3")
    a.e(f"s_mul_i32 s{sWOFF}, s{sT}, {8*3456}")
    a.e(f"s_mul_i32 s{sT+1}, s{sC}, 144")
    a.e(f"s_add_u32 s{sWOFF}, s{sWOFF}, s{sT+1}")
    a.e(f"s_mul_i32 s{sM0WB}, s{sT}, 3072")
    a.e(f"s_cmp_lt_u32 s{sWAVE}, 4")
    a.e(f"s_cselect_b32 s{sT+1}, 0, {UREG-GREG}")
    a.e(f"s_cselect_b32 s{sT+2}, 0, 2304")
    a.e(f"s_cselect_b32 s{sT+3}, 6, 3")
    a.e(f"s_add_u32 s{sM0WB}, s{sM0WB}, s{sT+1}")
    a.e(f"s_add_u32 s{sM0WB}, s{sM0WB}, {GREG}")
    a.e(f"s_add_u32 s{sWOFF}, s{sWOFF}, s{sT+2}")
    a.e(f"s_mov_b32 s{sM0W}, s{sM0WB}")
    a.e(f"s_mov_b32 s{sWSLOT}, 0")
    a.e(f"s_mov_b32 s{sDELTA}, {WSL}")
    for q in range(3):
        wdma_decode(a, q, 16, 17, 18)
        a.e(f"v_mul_u32_u24 v{10+q}, 3456, v16")
        a.e(f"v_lshl_add_u32 v{10+q}, v17, 6, v{10+q}")
        a.e(f"v_add_u32 v{10+q}, v{10+q}, v18")
        a.e(f"v_cmp_lt_u32 vcc, 2, v17")
        a.e(f"v_mov_b32 v15, {1152-192}")
        a.e("s_nop 0")
        a.e(f"v_cndmask_b32 v15, 0, v15, vcc")
        a.e(f"v_add_u32 v{10+q}, v{10+q}, v15")
        a.e(f"v_cmp_gt_u32 {sr(sMASK+2*q,2)}, s{sT+3}, v17")
    a.e("s_nop 3")
    prologue_dma(a, 3456, True)
    a.e(f"s_lshl_b32 s{sT}, s{sWAVE}, 5")
    x_read_bases(a, sT)
    tr_lane_base(a, 16, 17)
    for b in range(2):
        a.e(f"v_xor_b32 v15, {b}, v17")
        a.e(f"v_lshl_add_u32 v{1+b}, v15, 6, v16")
    a.e("v_lshrrev_b32 v15, 3, v0")
    a.e("v_mul_u32_u24 v15, 384, v15")
    a.e("v_and_b32 v13, 7, v0")
    a.e("v_lshl_add_u32 v15, v13, 4, v15")
    a.e(f"v_add_u32 v15, {UREG+256}, v15")
    a.e("s_waitcnt vmcnt(17)")
    a.e("v_cmp_gt_u32 vcc, 72, v0")
    a.e(f"s_and_saveexec_b64 {sr(sT,2)}, vcc")
    sk = a.newlabel("ngw")
    a.e(f"s_cbranch_execz {sk}")
    a.e(f"ds_write_b128 v15, v[20:23]")
    a.label(sk)
    a.e(f"s_mov_b64 exec, -1")
    a.e("v_lshrrev_b32 v13, 5, v14")
    a.e("v_lshlrev_b32 v13, 4, v13")
    a.e(f"v_add_u32 v13, {UREG+256}, v13")
    ACC = 64
    for i in range(160): a.e(f"v_mov_b32 v{ACC+i}, 0")
    a.e("s_waitcnt vmcnt(10) lgkmcnt(0)")
    a.e("s_barrier")
    stamp(a, 1)
    tiles = []
    for t in range(9):
        seg = t % 6 if t < 6 else t - 6
        tiles.append(dict(kind="tr", base=1+(seg&1), imm=(seg>>1)*128 + (49152 if t >= 6 else 0), acc=[ACC+t*16], swap=(t >= 3)))
    tiles.append(dict(kind="gw", imm=lambda ks: ks*32, acc=[ACC+9*16]))
    role = dict(ntt=1, tiles=tiles, XF=16, RING=32, NR=8, LA=6, rowpitch=3456, masked=True, nbases=2, gw=True)
    mainloop(a, role)
    a.c("QKV post")
    stamp(a, 2)
    a.e(f"s_mov_b32 s{sK}, {f32bits(LOG2E):#x}"); a.e(f"s_mov_b32 s{sK+1}, {f32bits(LOG2E):#x}")
    a.e(f"s_mov_b32 s{sK+2}, {f32bits(1e-6):#x}"); a.e(f"s_mov_b32 s{sK+3}, {f32bits(1e-6):#x}")
    a.e("s_barrier")
    a.e("s_nop 7")
    a.e(f"v_mul_f32 v3, s{sK}, v{ACC+144}")
    a.e("v_sub_f32 v3, 0, v3")
    a.e("v_exp_f32 v3, v3")
    a.e("s_nop 0")
    a.e("v_add_f32 v3, 1.0, v3")
    a.e("v_rcp_f32 v3, v3")
    a.e(f"s_lshl_b32 s{sT}, s{sR}, 8")
    a.e(f"s_lshl_b32 s{sT+1}, s{sWAVE}, 5")
    a.e(f"s_add_u32 s{sT}, s{sT}, s{sT+1}")
    a.e("v_and_b32 v2, 31, v14")
    a.e(f"v_add_u32 v2, s{sT}, v2")
    sk = a.newlabel("nog")
    a.e(f"s_cmp_lg_u32 s{sC}, 0"); a.e(f"s_cbranch_scc1 {sk}")
    a.e("v_lshlrev_b32 v15, 2, v2")
    a.e(f"s_mov_b32 s{sT+2}, {G_OFF}")
    a.e(f"buffer_store_dword v3, v15, {sr(SWS,4)}, s{sT+2} offen")
    a.label(sk)
    for i in range(4): a.e(f"v_mov_b32 v{16+i}, 0")
    a.e("v_lshlrev_b32 v15, 5, v0")
    a.e("v_cmp_gt_u32 vcc, 480, v0")
    a.e(f"s_and_saveexec_b64 {sr(sT,2)}, vcc")
    a.e(f"v_add_u32 v15, {AIMG}, v15")
    a.e("ds_write_b128 v15, v[16:19]")
    a.e("ds_write_b128 v15, v[16:19] offset:16")
    a.e("s_mov_b64 exec, -1")
    PQ = 224
    for t in range(5):
        phi_pack(a, ACC + (t>>1)*16 + (t&1)*8, PQ + 4*t, None, 32)
    a.e(f"v_mov_b32 v{PQ+18}, 0"); a.e(f"v_mov_b32 v{PQ+19}, 0")
    a.e(f"s_lshl_b32 s{sT}, s{sWAVE}, 11")
    a.e("v_lshlrev_b32 v1, 4, v14")
    a.e(f"v_add_u32 v1, s{sT}, v1")
    for t in range(3):
        for s_ in range(2):
            dst = 16 + ((t*2+s_) % 2)*4
            phi_pack(a, ACC + (3+t)*16 + s_*8, dst, None, 32)
            a.e(f"ds_write_b128 v1, {vr(dst,4)} offset:{t*16384 + s_*1024}")
    a.e("v_and_b32 v15, 31, v14")
    a.e("v_cmp_eq_u32 vcc, 8, v15")
    a.e("v_mov_b32 v15, 0x3f803f80")
    for t in range(3):
        for s_ in range(2):
            dst = 24 + ((t*2+s_) % 2)*4
            src = ACC + (6+t)*16 + s_*8
            for i in range(4): a.e(f"v_cvt_pk_bf16_f32 v{dst+i}, v{src+2*i}, v{src+2*i+1}")
            if t == 2:
                for i in range(4): a.e(f"v_cndmask_b32 v{dst+i}, v{dst+i}, v15, vcc")
            a.e(f"ds_write_b128 v1, {vr(dst,4)} offset:{(3+t)*16384 + s_*1024}") if (3+t)*16384 + s_*1024 < 65536 else \
                (a.e(f"v_add_u32 v13, {(3+t)*16384}, v1"), a.e(f"ds_write_b128 v13, {vr(dst,4)} offset:{s_*1024}"))
    a.e("s_waitcnt lgkmcnt(0)")
    a.e("s_barrier")
    pa = [0,0,1,1,1,2,2,0]; pb = [0,1,0,1,2,1,2,2]
    ca = sum(v << (4*i) for i, v in enumerate(pa)); cb = sum(v << (4*i) for i, v in enumerate(pb))
    a.e(f"s_lshl_b32 s{sT}, s{sWAVE}, 2")
    a.e(f"s_lshr_b32 s{sT+1}, {ca:#x}, s{sT}"); a.e(f"s_and_b32 s{sT+1}, s{sT+1}, 15")
    a.e(f"s_lshr_b32 s{sT+2}, {cb:#x}, s{sT}"); a.e(f"s_and_b32 s{sT+2}, s{sT+2}, 15")
    a.e(f"s_lshl_b32 s{sT+3}, s{sT+1}, 14")
    a.e(f"s_add_u32 s{sT+4}, s{sT+2}, 3"); a.e(f"s_lshl_b32 s{sT+4}, s{sT+4}, 14")
    a.e("v_lshlrev_b32 v15, 4, v14")
    a.e(f"v_add_u32 v4, s{sT+3}, v15")
    a.e(f"v_add_u32 v5, s{sT+4}, v15")
    KV = 64
    for i in range(16): a.e(f"v_mov_b32 v{KV+i}, 0")
    for q in range(16):
        a.lds(f"ds_read_b128 {vr(80+8*q,4)}, v4 offset:{q*1024}", ("ka", q))
        a.lds(f"ds_read_b128 {vr(84+8*q,4)}, v5 offset:{q*1024}", ("kb", q))
        if q >= 4:
            a.wait_lds([("kb", q-4)])
            qq = q-4
            a.e(f"v_mfma_f32_32x32x16_bf16 {vr(KV,16)}, {vr(80+8*qq,4)}, {vr(84+8*qq,4)}, {vr(KV,16)}")
    for qq in range(12, 16):
        a.wait_lds([("kb", qq)])
        a.e(f"v_mfma_f32_32x32x16_bf16 {vr(KV,16)}, {vr(80+8*qq,4)}, {vr(84+8*qq,4)}, {vr(KV,16)}")
    a.e(f"s_lshl_b32 s{sT+1}, s{sT+1}, 5")
    a.e(f"s_lshl_b32 s{sT+2}, s{sT+2}, 5")
    a.e("v_lshrrev_b32 v4, 5, v14"); a.e("v_lshlrev_b32 v4, 2, v4")
    a.e(f"v_add_u32 v4, s{sT+1}, v4")
    a.e("v_and_b32 v5, 31, v14")
    a.e(f"v_add_u32 v5, s{sT+2}, v5")
    a.e("v_mov_b32 v6, 72")
    a.e(f"v_cmp_eq_u32 {sr(sMASK,2)}, v6, v5")
    a.e(f"s_lshl_b32 s{sT}, s{sC}, 3"); a.e(f"s_add_u32 s{sT}, s{sT}, s{sR}")
    a.e(f"s_mul_i32 s{sT}, s{sT}, {KVP_STRIDE}"); a.e(f"s_add_u32 s{sT}, s{sT}, {KVP_OFF}")
    a.e("v_mov_b32 v7, 18")
    a.e("v_mov_b32 v12, 0x40000000")
    for rg in range(16):
        i, c = rg >> 2, rg & 3
        T0 = 16 + (rg % 4)*4
        a.e(f"v_add_u32 v{T0}, {8*i+c}, v4")
        a.e(f"v_mul_u32_u24 v{T0+1}, 3641, v{T0}")
        a.e(f"v_lshrrev_b32 v{T0+1}, 16, v{T0+1}")
        a.e(f"v_mul_u32_u24 v{T0+1}, 18, v{T0+1}")
        a.e(f"v_sub_u32 v{T0+1}, v5, v{T0+1}")
        a.e(f"v_cmp_gt_u32 vcc, 18, v{T0+1}")
        a.e(f"s_or_b64 vcc, vcc, {sr(sMASK,2)}")
        a.e(f"v_cmp_gt_u32 {sr(sMASK+2,2)}, v6, v{T0}")
        a.e(f"v_cndmask_b32 v{T0+1}, v{T0+1}, v7, {sr(sMASK,2)}")
        a.e(f"s_and_b64 vcc, vcc, {sr(sMASK+2,2)}")
        a.e(f"v_mul_u32_u24 v{T0}, 19, v{T0}")
        a.e(f"v_add_lshl_u32 v{T0}, v{T0}, v{T0+1}, 2")
        a.e(f"v_cndmask_b32 v{T0}, v12, v{T0}, vcc")
        if rg == 0: a.e("s_nop 7")
        a.e(f"buffer_store_dword v{KV+rg}, v{T0}, {sr(SWS,4)}, s{sT} offen sc1")
    a.e("s_waitcnt vmcnt(0)")
    a.e("s_barrier")
    sk = a.newlabel("npoll")
    a.e(f"s_cmp_lg_u32 s{sWAVE}, 0"); a.e(f"s_cbranch_scc1 {sk}")
    a.e(f"s_lshl_b32 s{sT+1}, s{sC}, 2")
    a.e("v_mov_b32 v16, 1"); a.e("v_mov_b32 v17, 0")
    a.e("s_mov_b64 exec, 1")
    a.e(f"buffer_atomic_add v16, v17, {sr(SDBG,4)}, s{sT+1} offen")
    pl = a.newlabel("poll")
    a.label(pl)
    a.e(f"buffer_load_dword v16, v17, {sr(SDBG,4)}, s{sT+1} offen sc1")
    a.e("s_waitcnt vmcnt(0)")
    a.e(f"v_readfirstlane_b32 s{sT+2}, v16")
    a.e("s_nop 3")
    a.e(f"s_cmp_ge_u32 s{sT+2}, 8")
    dn = a.newlabel("pdone")
    a.e(f"s_cbranch_scc1 {dn}")
    a.e("s_sleep 2")
    a.e(f"s_branch {pl}")
    a.label(dn)
    a.e("s_mov_b64 exec, -1")
    a.label(sk)
    a.e("s_barrier")
    stamp(a, 3)
    a.e(f"s_mul_i32 s{sT}, s{sC}, {8*KVP_STRIDE}"); a.e(f"s_add_u32 s{sT}, s{sT}, {KVP_OFF}")
    a.e("v_lshlrev_b32 v1, 2, v0")
    a.e("v_add_u32 v2, 4096, v1")
    for rr in range(8):
        if rr: a.e(f"s_add_u32 s{sT}, s{sT}, {KVP_STRIDE}")
        for q in range(3):
            a.e(f"buffer_load_dword v{64+q*8+rr}, v{1 if q < 2 else 2}, {sr(SWS,4)}, s{sT} offen offset:{(q%2)*2048} sc1")
    for q in range(3):
        T0 = 16 + q*8
        a.e(f"v_add_u32 v{T0}, {512*q}, v0")
        a.e(f"v_mul_u32_u24 v{T0+1}, 3450, v{T0}")
        a.e(f"v_lshrrev_b32 v{T0+1}, 16, v{T0+1}")
        a.e(f"v_mul_u32_u24 v{T0+2}, 19, v{T0+1}")
        a.e(f"v_sub_u32 v{T0+2}, v{T0}, v{T0+2}")
        a.e(f"v_mul_u32_u24 v{T0+3}, 3641, v{T0+1}")
        a.e(f"v_lshrrev_b32 v{T0+3}, 16, v{T0+3}")
        a.e(f"v_mul_u32_u24 v{T0+4}, 18, v{T0+3}")
        a.e(f"v_add_u32 v{T0+4}, v{T0+4}, v{T0+2}")
        a.e(f"v_add_u32 v{T0+3}, 72, v{T0+3}")
        a.e(f"v_cmp_eq_u32 {sr(sMASK+2*q,2)}, v7, v{T0+2}")
        a.e("s_nop 1")
        a.e(f"v_cndmask_b32 v{T0+3}, v{T0+4}, v{T0+3}, {sr(sMASK+2*q,2)}")
        a.e(f"v_lshrrev_b32 v{T0+4}, 5, v{T0+3}")
        a.e(f"v_mul_u32_u24 v{T0+4}, 5, v{T0+4}")
        a.e(f"v_lshrrev_b32 v{T0+5}, 4, v{T0+1}")
        a.e(f"v_add_lshl_u32 v{T0+4}, v{T0+4}, v{T0+5}, 6")
        a.e(f"v_and_b32 v{T0+5}, 31, v{T0+3}")
        a.e(f"v_add_u32 v{T0+4}, v{T0+4}, v{T0+5}")
        a.e(f"v_bfe_u32 v{T0+5}, v{T0+1}, 2, 1")
        a.e(f"v_lshl_add_u32 v{T0+4}, v{T0+5}, 5, v{T0+4}")
        a.e(f"v_lshlrev_b32 v{T0+4}, 4, v{T0+4}")
        a.e(f"v_bfe_u32 v{T0+5}, v{T0+1}, 3, 1")
        a.e(f"v_lshl_add_u32 v{T0+4}, v{T0+5}, 3, v{T0+4}")
        a.e(f"v_and_b32 v{T0+5}, 3, v{T0+1}")
        a.e(f"v_lshl_add_u32 v{T0+4}, v{T0+5}, 1, v{T0+4}")
        a.e(f"v_add_u32 v{T0+4}, {AIMG}, v{T0+4}")
    a.e("s_waitcnt vmcnt(0)")
    for q in range(3):
        b = 64 + q*8
        for rr in (1,2,3): a.e(f"v_add_f32 v{b}, v{b}, v{b+rr}")
        for rr in (5,6,7): a.e(f"v_add_f32 v{b+4}, v{b+4}, v{b+rr}")
        a.e(f"v_add_f32 v{b}, v{b}, v{b+4}")
        a.e(f"v_cvt_pk_bf16_f32 v{b}, v{b}, v{b}")
    for q in range(3):
        T0 = 16 + q*8; b = 64 + q*8
        a.e(f"v_mov_b32 v15, 1368")
        a.e(f"v_cmp_gt_u32 vcc, v15, v{T0}")
        a.e("s_mov_b64 exec, vcc")
        a.e(f"ds_write_b16 v{T0+4}, v{b}")
        a.e(f"s_and_b64 exec, exec, {sr(sMASK+2*q,2)}")
        a.e(f"ds_write_b16 v{T0+4}, v{b} offset:64")
        a.e("s_mov_b64 exec, -1")
    a.e("s_waitcnt lgkmcnt(0)")
    a.e("s_barrier")
    O = 64
    for i in range(48): a.e(f"v_mov_b32 v{O+i}, 0")
    a.e("v_lshlrev_b32 v1, 4, v14")
    a.e(f"v_add_u32 v4, {AIMG}, v1")
    need = {0: [0,1,2], 1: [1,2,3,4], 2: [0,1,2,3,4]}
    lst = [(mt, t) for mt in range(3) for t in need[mt]]
    for n, (mt, t) in enumerate(lst):
        a.lds(f"ds_read_b128 {vr(112+4*n,4)}, v4 offset:{(mt*5+t)*1024}", ("oa", n))
    for n, (mt, t) in enumerate(lst):
        a.wait_lds([("oa", n)])
        a.e(f"v_mfma_f32_32x32x16_bf16 {vr(O+16*mt,16)}, {vr(112+4*n,4)}, {vr(PQ+4*t,4)}, {vr(O+16*mt,16)}")
    a.e("s_nop 15")
    for h in range(4):
        a.e(f"v_add_f32 v{16+h}, s{sK+2}, v{O+32+4+h}")
    for h in range(4): a.e(f"v_rcp_f32 v{16+h}, v{16+h}")
    a.e("s_nop 0")
    for h in range(4): a.e(f"v_mul_f32 v{16+h}, v{16+h}, v3")
    a.e("v_cmp_lt_u32 vcc, 31, v14")
    mixed = {}
    nxt = 20
    for G in range(9):
        for c in range(4):
            h0, h1 = (8*G+c)//18, (8*G+4+c)//18
            if h0 != h1 and (h0,h1) not in mixed:
                mixed[(h0,h1)] = nxt
                a.e(f"v_cndmask_b32 v{nxt}, v{16+h0}, v{16+h1}, vcc")
                nxt += 1
    a.e(f"s_lshl_b32 s{sT}, s{sR}, 3"); a.e(f"s_add_u32 s{sT}, s{sT}, s{sWAVE}")
    a.e(f"s_mul_i32 s{sT}, s{sT}, {NKS}"); a.e(f"s_add_u32 s{sT}, s{sT}, 288"); a.e(f"s_lshl_b32 s{sT}, s{sT}, 10")
    a.e(f"s_mul_i32 s{sT+1}, s{sC}, 9")
    for G in range(9):
        src = O + (G>>2)*16 + (G&3)*4
        T0 = 32 + (G%4)*8
        for c in range(4):
            h0, h1 = (8*G+c)//18, (8*G+4+c)//18
            sc = 16+h0 if h0 == h1 else mixed[(h0,h1)]
            a.e(f"v_mul_f32 v{T0+c}, v{src+c}, v{sc}")
        a.e(f"v_cvt_pk_bf16_f32 v{T0+4}, v{T0}, v{T0+1}")
        a.e(f"v_cvt_pk_bf16_f32 v{T0+5}, v{T0+2}, v{T0+3}")
        a.e(f"s_add_u32 s{sT+2}, s{sT+1}, {G}")
        a.e(f"s_lshr_b32 s{sT+3}, s{sT+2}, 1"); a.e(f"s_lshl_b32 s{sT+3}, s{sT+3}, 10")
        a.e(f"s_and_b32 s{sT+2}, s{sT+2}, 1"); a.e(f"s_lshl_b32 s{sT+2}, s{sT+2}, 3")
        a.e(f"s_add_u32 s{sT+2}, s{sT+2}, s{sT+3}"); a.e(f"s_add_u32 s{sT+2}, s{sT+2}, s{sT}")
        a.e(f"buffer_store_dwordx2 {vr(T0+4,2)}, v1, {sr(SWS,4)}, s{sT+2} offen")
    if STAMPS: a.e("s_waitcnt vmcnt(0)")
    stamp(a, 4)
    stamp(a, 6, real=True)
    stamp_flush(a, 7, sWAVE, SWS)
    a.e("s_endpgm")

def gen_k1(name="k1_kernel"):
    a = Asm()
    a.lines.append(f".globl {name}\n.p2align 8\n.type {name},@function\n{name}:")
    a.e("s_cmp_ge_u32 s2, 256")
    a.e("s_cbranch_scc1 k1_exit")
    a.e("s_load_dwordx16 s[48:63], s[0:1], 0")
    a.e("s_load_dwordx4 s[64:67], s[0:1], 64")
    a.e("s_load_dwordx2 s[68:69], s[0:1], 80")
    common_setup(a)
    a.e("s_waitcnt lgkmcnt(0)")
    stamp(a, 0)
    stamp(a, 5, real=True)
    srd(a, 48, SX, S*D*2)
    srd(a, 68, SWS, WS_USED)
    a.e(f"s_and_b32 s{sT}, s2, 7")
    a.e(f"s_lshr_b32 s{sT+1}, s2, 3")
    a.e(f"s_cmp_lt_u32 s{sT+1}, 8")
    a.e("s_cbranch_scc1 k1_qkv")
    a.e(f"s_sub_u32 s{sT+1}, s{sT+1}, 8")
    a.e(f"s_and_b32 s{sR}, s{sT+1}, 7")
    a.e(f"s_lshr_b32 s{sT+1}, s{sT+1}, 3")
    a.e(f"s_mul_i32 s{sC}, s{sT}, 3")
    a.e(f"s_add_u32 s{sC}, s{sC}, s{sT+1}")
    gen_ffn(a)
    a.label("k1_qkv")
    a.e(f"s_mov_b32 s{sR}, s{sT+1}")
    a.e(f"s_mov_b32 s{sC}, s{sT}")
    a.lgkm = []
    gen_qkv(a)
    a.label("k1_exit")
    a.e("s_endpgm")
    return a.text() + KD.format(name=name, nv=256, ns=102, ao=256)
```

```python
from common import *
from k1 import srd, wdma_decode

LAUNCH = "; @launch kernel=k2_kernel grid=(240,1,1) block=(256,1,1) lds=98304"
NO, NH = 68, 52
WSL = 12288
NS = 8
SW, SWS, SDBG, SOUT, SWO = 8, 12, 20, 16, 4
sWAVE, sMT, sNT, sJ, sTILE = 24, 25, 26, 27, 28
sWOFF, sBOFF, sNST, sST, sSW = 29, 30, 31, 32, 33
sM0WB = 35
sT = 36
sWCUR, sBCUR = 44, 45
sFLAG = 46
OOB = 0x7fff0000

def gen_k2(name="k2_kernel"):
    a = Asm()
    a.lines.append(f".globl {name}\n.p2align 8\n.type {name},@function\n{name}:")
    a.e("s_cmp_ge_u32 s2, 240")
    a.e("s_cbranch_scc1 k2_exit")
    a.e("s_load_dwordx16 s[48:63], s[0:1], 0")
    a.e("s_load_dwordx4 s[64:67], s[0:1], 64")
    a.e("s_load_dwordx2 s[68:69], s[0:1], 80")
    a.e("v_and_b32 v14, 63, v0")
    a.e("v_lshrrev_b32 v15, 6, v0")
    a.e("s_nop 0")
    a.e(f"v_readfirstlane_b32 s{sWAVE}, v15")
    a.e(f"s_and_b32 s{sT}, s2, 7"); a.e(f"s_mul_i32 s{sT}, s{sT}, 30")
    a.e(f"s_lshr_b32 s{sT+1}, s2, 3"); a.e(f"s_add_u32 s{sT}, s{sT}, s{sT+1}")
    a.e(f"s_mul_i32 s{sJ}, s{sT}, 1366"); a.e(f"s_lshr_b32 s{sJ}, s{sJ}, 16")
    a.e(f"s_mul_i32 s{sT+1}, s{sJ}, 48"); a.e(f"s_sub_u32 s{sTILE}, s{sT}, s{sT+1}")
    a.e(f"s_mul_i32 s{sMT}, s{sTILE}, 21846"); a.e(f"s_lshr_b32 s{sMT}, s{sMT}, 16")
    a.e(f"s_mul_i32 s{sT+1}, s{sMT}, 3"); a.e(f"s_sub_u32 s{sNT}, s{sTILE}, s{sT+1}")
    for q in range(3):
        wdma_decode(a, q, 16, 17, 18)
        a.e(f"v_mul_u32_u24 v{10+q}, 1152, v16")
        a.e(f"v_lshl_add_u32 v{10+q}, v17, 6, v{10+q}")
        a.e(f"v_add_u32 v{10+q}, v{10+q}, v18")
    a.e("s_waitcnt lgkmcnt(0)")
    stamp(a, 0); stamp(a, 5, real=True)
    srd(a, 60, SW, F*D*2)
    srd(a, 52, SWO, D*D*2)
    srd(a, 68, SWS, WS_USED)
    srd(a, 66, SDBG, 256)
    srd(a, 64, SOUT, S*D*2)
    a.e(f"s_mul_i32 s{sT}, s{sJ}, {NO}")
    a.e(f"s_lshl_b32 s{sT+1}, s{sT}, 4"); a.e(f"s_lshl_b32 s{sT+2}, s{sWAVE}, 3"); a.e(f"s_add_u32 s{sT+1}, s{sT+1}, s{sT+2}")
    a.e(f"s_mul_i32 s{sWOFF}, s{sT+1}, 1152"); a.e(f"s_mul_i32 s{sT+3}, s{sNT}, 384"); a.e(f"s_add_u32 s{sWOFF}, s{sWOFF}, s{sT+3}")
    a.e(f"s_mul_i32 s{sT+4}, s{sT+2}, 1152"); a.e(f"s_add_u32 s{sT+4}, s{sT+4}, s{sT+3}")
    a.e(f"s_mov_b32 s47, s{sT+4}")
    a.e(f"s_lshl_b32 s{sT+1}, s{sMT}, 2"); a.e(f"s_add_u32 s{sT+1}, s{sT+1}, s{sWAVE}")
    a.e(f"s_mul_i32 s{sT+1}, s{sT+1}, {NKS}"); a.e(f"s_add_u32 s{sT+1}, s{sT+1}, s{sT}"); a.e(f"s_lshl_b32 s{sBOFF}, s{sT+1}, 10")
    a.e(f"s_cmp_eq_u32 s{sJ}, 4")
    a.e(f"s_cselect_b32 s{sNST}, {NH//2}, {NO//2}")
    a.e(f"s_cselect_b32 s{sSW}, 8, 1000")
    a.e(f"s_mul_i32 s{sM0WB}, s{sWAVE}, 3072")
    a.e("v_lshlrev_b32 v13, 4, v14")
    a.e(f"s_lshl_b32 s{sT}, s{sMT}, 7"); a.e(f"s_lshl_b32 s{sT+1}, s{sWAVE}, 5"); a.e(f"s_add_u32 s{sT}, s{sT}, s{sT+1}")
    a.e("v_and_b32 v9, 31, v14"); a.e(f"v_add_u32 v9, s{sT}, v9")
    a.e("v_lshlrev_b32 v15, 2, v9")
    a.e(f"s_mov_b32 s{sT}, {G_OFF}")
    a.e(f"buffer_load_dword v8, v15, {sr(SWS,4)}, s{sT} offen")
    a.e("v_lshrrev_b32 v15, 5, v14"); a.e("v_lshlrev_b32 v16, 2, v15")
    a.e("v_bfe_u32 v15, v14, 2, 2"); a.e("v_add_u32 v16, v16, v15"); a.e("v_mul_u32_u24 v16, 384, v16")
    a.e("v_lshrrev_b32 v17, 1, v15")
    a.e("v_bfe_u32 v15, v14, 4, 1"); a.e("v_lshl_add_u32 v16, v15, 5, v16")
    a.e("v_and_b32 v15, 3, v14"); a.e("v_lshl_add_u32 v16, v15, 3, v16")
    for b in range(2):
        a.e(f"v_xor_b32 v15, {b}, v17")
        a.e(f"v_lshl_add_u32 v{1+b}, v15, 6, v16")
        a.e(f"v_add_u32 v{3+b}, {4*WSL}, v{1+b}")
    BF = 32
    RING = 96
    NR, LA = 8, 6
    ACC = 128
    a.e(f"s_mov_b32 s{sST}, 0")
    a.e(f"s_mov_b32 s{sBCUR}, 0")
    def dma_w(slot):
        sk = a.newlabel("nsw")
        a.e(f"s_cmp_lg_u32 s{sST}, s{sSW}"); a.e(f"s_cbranch_scc1 {sk}")
        for i in range(3): a.e(f"s_mov_b32 s{SW+i}, s{SWO+i}")
        a.e(f"s_mov_b32 s{sWOFF}, s47")
        a.label(sk)
        a.e(f"s_cmp_lt_u32 s{sST}, s{sNST}")
        a.e(f"s_cselect_b32 s{sWCUR}, s{sWOFF}, {OOB}")
        for q in range(3):
            a.e(f"s_add_u32 m0, s{sM0WB}, {slot*WSL + q*1024}")
            a.e("s_nop 0")
            a.e(f"buffer_load_dwordx4 v{10+q}, {sr(SW,4)}, s{sWCUR} offen lds")
        a.e(f"s_add_u32 s{sWOFF}, s{sWOFF}, {32*1152}")
        a.e(f"s_add_u32 s{sST}, s{sST}, 1")
    def load_b(slot):
        a.e(f"s_lshr_b32 s{sT}, s{sBCUR}, 1")
        a.e(f"s_cmp_lt_u32 s{sT}, s{sNST}")
        a.e(f"s_cselect_b32 s{sT}, s{sBOFF}, {OOB}")
        a.e(f"buffer_load_dwordx4 {vr(BF+4*slot,4)}, v13, {sr(SWS,4)}, s{sT} offen")
        a.e(f"s_add_u32 s{sBOFF}, s{sBOFF}, 1024")
        a.e(f"s_add_u32 s{sBCUR}, s{sBCUR}, 1")
    for u in range(-8, 0):
        load_b(2*u+16)
        if u+7 >= 0: dma_w(u+7)
        load_b(2*u+17)
    for i in range(96): a.e(f"v_mov_b32 v{ACC+i}, 0")
    a.e("s_waitcnt vmcnt(31)")
    a.e("s_barrier")
    stamp(a, 1)
    def read_tile(n):
        nn = n % 96
        ks, dt = divmod(nn, 6)
        st, kk = ks >> 1, ks & 1
        base = 1 + (dt & 1) + (2 if st >= 4 else 0)
        imm = (st % 4)*WSL + kk*6144 + (dt >> 1)*128
        slot = RING + (n % NR)*4
        for half in range(2):
            a.lds(f"ds_read_b64_tr_b16 {vr(slot+2*half,2)}, v{base} offset:{imm + half*3072}", ("A", nn))
    for n in range(LA): read_tile(n)
    entry = list(a.lgkm)
    a.e(f"s_mov_b32 s{sT+4}, 0")
    a.e(f"s_mov_b32 s{sFLAG}, 0")
    a.label("k2_loop")
    for ks in range(16):
        for dt in range(6):
            n = ks*6 + dt
            read_tile(n + LA)
            a.wait_lds([("A", n)])
            a.e(f"v_mfma_f32_32x32x16_bf16 {vr(ACC+16*dt,16)}, {vr(RING+(n%NR)*4,4)}, {vr(BF+4*ks,4)}, {vr(ACC+16*dt,16)}")
        load_b(ks)
        if ks % 2 == 0:
            a.e("s_waitcnt vmcnt(27)")
            a.e("s_barrier")
            dma_w((ks//2 + 7) % 8)
        else:
            a.e(f"s_add_u32 s{sT+4}, s{sT+4}, 1")
            a.e(f"s_cmp_ge_u32 s{sT+4}, s{sNST}")
            a.e("s_cbranch_scc1 k2_done")
    assert a.lgkm == entry
    a.e(f"s_cmp_lg_u32 s{sT+4}, s{sSW}")
    a.e("s_cbranch_scc1 k2_loop")
    a.e(f"s_mov_b32 s{sFLAG}, 1")
    a.label("k2_scale")
    a.e("s_nop 15")
    a.e("v_sub_f32 v8, 1.0, v8")
    for i in range(96): a.e(f"v_mul_f32 v{ACC+i}, v8, v{ACC+i}")
    a.e(f"s_cmp_eq_u32 s{sFLAG}, 1")
    a.e(f"s_mov_b32 s{sFLAG}, 2")
    a.e("s_cbranch_scc1 k2_loop")
    a.e("s_branch k2_pub")
    a.label("k2_done")
    a.e(f"s_cmp_eq_u32 s{sFLAG}, 0")
    a.e("s_cbranch_scc1 k2_scale")
    a.e("s_nop 15")
    a.label("k2_pub")
    a.lgkm = []
    a.e("s_waitcnt lgkmcnt(0)")
    stamp(a, 2)
    a.e(f"s_mul_i32 s{sT}, s{sTILE}, {4*5*24576}")
    a.e(f"s_mul_i32 s{sT+1}, s{sWAVE}, 6144")
    a.e(f"s_add_u32 s{sT}, s{sT}, s{sT+1}"); a.e(f"s_add_u32 s{sT}, s{sT}, {P_OFF}")
    a.e(f"s_mul_i32 s{sT+1}, s{sJ}, 24576"); a.e(f"s_add_u32 s{sT+1}, s{sT+1}, s{sT}")
    a.e("v_add_u32 v12, 4096, v13")
    for i in range(4):
        if i: a.e(f"s_add_u32 s{sT+1}, s{sT+1}, {5*24576}")
        for dt in range(6):
            a.e(f"buffer_store_dwordx4 {vr(ACC+16*dt+4*i,4)}, v{13 if dt < 4 else 12}, {sr(SWS,4)}, s{sT+1} offen offset:{(dt%4)*1024} sc1")
    a.e("s_waitcnt vmcnt(0)")
    a.e("s_barrier")
    sk = a.newlabel("npoll")
    a.e(f"s_cmp_lg_u32 s{sWAVE}, 0"); a.e(f"s_cbranch_scc1 {sk}")
    a.e(f"s_lshl_b32 s{sT+1}, s{sTILE}, 2")
    a.e("v_mov_b32 v16, 1"); a.e("v_mov_b32 v17, 0")
    a.e("s_mov_b64 exec, 1")
    a.e(f"buffer_atomic_add v16, v17, {sr(SDBG,4)}, s{sT+1} offen")
    a.e(f"s_cmp_eq_u32 s{sJ}, 4")
    dn = a.newlabel("pdone")
    a.e(f"s_cbranch_scc1 {dn}")
    pl = a.newlabel("poll")
    a.label(pl)
    a.e(f"buffer_load_dword v16, v17, {sr(SDBG,4)}, s{sT+1} offen sc1")
    a.e("s_waitcnt vmcnt(0)")
    a.e(f"v_readfirstlane_b32 s{sT+2}, v16")
    a.e("s_nop 3")
    a.e(f"s_cmp_ge_u32 s{sT+2}, 5")
    a.e(f"s_cbranch_scc1 {dn}")
    a.e("s_sleep 1")
    a.e(f"s_branch {pl}")
    a.label(dn)
    a.e("s_mov_b64 exec, -1")
    a.label(sk)
    a.e(f"s_cmp_eq_u32 s{sJ}, 4")
    a.e("s_cbranch_scc1 k2_exit2")
    a.e("s_barrier")
    stamp(a, 3)
    a.e(f"s_mul_i32 s{sT+1}, s{sJ}, {5*24576}"); a.e(f"s_add_u32 s{sT+1}, s{sT+1}, s{sT}")
    for jj in range(5):
        if jj: a.e(f"s_add_u32 s{sT+1}, s{sT+1}, 24576")
        for dt in range(6):
            a.e(f"buffer_load_dwordx4 {vr(32+jj*24+dt*4,4)}, v{13 if dt < 4 else 12}, {sr(SWS,4)}, s{sT+1} offen offset:{(dt%4)*1024} sc1")
    a.e("v_mul_u32_u24 v1, 1152, v9")
    a.e("v_lshrrev_b32 v15, 5, v14"); a.e("v_lshl_add_u32 v1, v15, 3, v1")
    a.e(f"s_mul_i32 s{sT+2}, s{sNT}, 384"); a.e(f"s_lshl_b32 s{sT+3}, s{sJ}, 4"); a.e(f"s_add_u32 s{sT+2}, s{sT+2}, s{sT+3}")
    a.e("s_waitcnt vmcnt(0)")
    for dt in range(6):
        b = 32 + dt*4
        for jj in range(1, 5):
            for h in range(2):
                a.e(f"v_pk_add_f32 {vr(b+2*h,2)}, {vr(b+2*h,2)}, {vr(b+jj*24+2*h,2)}")
        a.e(f"v_cvt_pk_bf16_f32 v{b}, v{b}, v{b+1}")
        a.e(f"v_cvt_pk_bf16_f32 v{b+1}, v{b+2}, v{b+3}")
        a.e(f"buffer_store_dwordx2 {vr(b,2)}, v1, {sr(SOUT,4)}, s{sT+2} offen offset:{dt*64}")
    if STAMPS: a.e("s_waitcnt vmcnt(0)")
    a.label("k2_exit2")
    stamp(a, 4); stamp(a, 6, real=True)
    if STAMPS: a.e("s_add_u32 s2, s2, 256")
    stamp_flush(a, 7, sWAVE, SWS)
    a.label("k2_exit")
    a.e("s_endpgm")
    return a.text() + KD.format(name=name, nv=256, ns=102, ao=256)
```

```python
import sys
from common import *
import k1
hdr = open("gated_mix__linear_attn_block__geglu_ffn__prompt.s.ref").read().split("; Override launch")[0]
parts = [hdr]
launch = ["; @launch kernel=k1_kernel grid=(256,1,1) block=(512,1,1) lds=163840"]
body = [k1.gen_k1()]
try:
    import k2
    launch.append(k2.LAUNCH); body.append(k2.gen_k2())
except ImportError:
    pass
out = hdr + "\n".join(launch) + "\n.amdgcn_target \"amdgcn-amd-amdhsa--gfx950\"\n.text\n" + "\n".join(body)
open(sys.argv[1] if len(sys.argv) > 1 else "k.s", "w").write(out)
```
